```python
import torch

def _softmax(x, axis=-1):
    return torch.softmax(x, dim=axis)
def _gelu(x):
    return torch.nn.functional.gelu(x, approximate="tanh")
def _silu(x):
    return torch.nn.functional.silu(x)
def _sigmoid(x):
    return torch.sigmoid(x)
def _layernorm(x, axis=-1, eps=1e-5):
    m = x.mean(dim=axis, keepdim=True)
    v = x.var(dim=axis, keepdim=True, unbiased=False)
    return (x - m) / torch.sqrt(v + eps)
def _scatter_add(tgt, idx, src, axis=0):
    return tgt.clone().index_add_(axis, idx, src)
def _segment_sum(src, seg, n):
    out = torch.zeros((n,) + src.shape[1:], dtype=src.dtype)
    return out.index_add_(0, seg, src)
def _pad(x, pw):
    flat = tuple(v for pair in reversed(pw) for v in pair)
    return torch.nn.functional.pad(x, flat)

kernel_name = 'standalone__weight_only_int_quip_2__prompt'

def setup_inputs():

    _w = (lambda a: (lambda t: t.to(torch.bfloat16) if t.is_floating_point() else t)(torch.as_tensor(a)))
    B, S, D, F = 1, 2048, 576, 4608
    nbits = max(2, min(4, int(4)))
    G = 64 if 64 > 0 else D
    D = (D // G) * G
    ng = D // G
    qmax = 1 << nbits
    qw = torch.randint(0, qmax, (D, F)).to(torch.int32)
    zp = torch.randint(0, qmax, (ng, F)).to(float)
    sc = torch.abs((lambda *s: torch.randn(*s, dtype=torch.bfloat16) * 0.05)(ng, F)).to(float) * 0.1 + 0.02
    return {
        "x": _w((lambda *s: torch.randn(*s, dtype=torch.bfloat16) * 0.05)(B, S, D)),
        "qw": _w(qw),
        "scales": _w(sc),
        "zeros": _w(zp),
    }

def reference(x, qw, scales, zeros):
    B, S, D = x.shape
    ng, F = scales.shape
    G = D // ng
    s = (lambda x, n, axis: torch.repeat_interleave(x, n, dim=axis))(scales, G, axis=0)
    z = (lambda x, n, axis: torch.repeat_interleave(x, n, dim=axis))(zeros, G, axis=0)
    w = ((lambda x, dt: x.to(dt))(qw, x.dtype) - z) * s
    return torch.einsum("bsd,df->bsf", x, w)
```

```python
import sys
NAME="standalone__weight_only_int_quip_2__prompt"
hdr=open('cdna_kernels/%s.s.ref'%NAME).read().split('\n')
head=[l for l in hdr if l.startswith(';') and '@launch' not in l]
L=[]
def e(s): L.append("    "+s)
M,N,K=2048,4608,576
NWG=(M//64)*(N//64)//4
L+=head
L.append("; @launch grid=(%d,1,1) block=(256,1,1) lds=0"%NWG)
L.append('.amdgcn_target "amdgcn-amd-amdhsa--gfx950"')
L.append(".text")
L.append(".globl %s_kernel"%NAME)
L.append(".p2align 8")
L.append(".type %s_kernel,@function"%NAME)
L.append("%s_kernel:"%NAME)
e("s_cmp_ge_u32 s2, %d"%NWG)
e("s_cbranch_scc1 L_done")
e("s_load_dwordx4 s[4:7], s[0:1], 0")
e("s_load_dwordx4 s[8:11], s[0:1], 16")
e("s_load_dwordx2 s[12:13], s[0:1], 32")
e("v_lshrrev_b32 v1, 6, v0")
e("s_nop 0")
e("v_readfirstlane_b32 s3, v1")
e("s_lshl_b32 s14, s2, 2")
e("s_add_u32 s14, s14, s3")
e("s_mov_b32 s15, %d"%((2**32+71)//72))
e("s_mul_hi_u32 s16, s14, s15")
e("s_mul_i32 s17, s16, 72")
e("s_sub_u32 s17, s14, s17")
e("s_waitcnt lgkmcnt(0)")
def srd(base,p,size):
    e("s_mov_b32 s%d, s%d"%(base,p))
    e("s_and_b32 s%d, s%d, 0xffff"%(base+1,p+1))
    e("s_mov_b32 s%d, %d"%(base+2,size))
    e("s_mov_b32 s%d, 0x00020000"%(base+3))
srd(20,4,M*K*2)
srd(24,6,K*N*4)
srd(28,8,9*N*2)
srd(32,10,9*N*2)
srd(36,12,M*N*2)
e("v_and_b32 v2, 63, v0")
e("v_and_b32 v3, 15, v2")
e("v_lshrrev_b32 v4, 4, v2")
e("s_lshl_b32 s18, s17, 8")
e("v_mul_u32_u24 v5, %d, v4"%(8*18432))
e("v_lshl_add_u32 v5, v3, 4, v5")
e("v_add_u32 v5, s18, v5")
e("s_lshl_b32 s19, s17, 7")
e("v_lshlrev_b32 v6, 3, v3")
e("v_add_u32 v6, s19, v6")
e("s_mul_i32 s40, s16, %d"%(64*1152))
e("v_mul_u32_u24 v7, 1152, v3")
e("v_lshl_add_u32 v7, v4, 4, v7")
e("v_add_u32 v7, s40, v7")
for i in range(8): e("s_mov_b32 s%d, %d"%(44+i,i*18432))
for t in range(4): e("s_mov_b32 s%d, %d"%(52+t,t*16*1152))
for r in range(64,128): e("v_mov_b32 v%d, 0"%r)
e("s_mov_b32 s60, 0")
L.append("L_loop:")
e("buffer_load_dwordx2 v[8:9], v6, s[28:31], 0 offen")
e("buffer_load_dwordx2 v[10:11], v6, s[32:35], 0 offen")
for ks in range(2):
    for i in range(8):
        e("buffer_load_dwordx4 v[%d:%d], v5, s[24:27], s%d offen"%(128+4*i,131+4*i,44+i))
    for t in range(4):
        e("buffer_load_dwordx4 v[%d:%d], v7, s[20:23], s%d offen"%(160+4*t,163+4*t,52+t))
    e("v_add_u32 v5, %d, v5"%(32*18432))
    e("v_add_u32 v7, 64, v7")
    e("s_waitcnt vmcnt(0)")
    if ks==0:
        e("v_lshlrev_b32 v12, 16, v8"); e("v_and_b32 v13, 0xffff0000, v8")
        e("v_lshlrev_b32 v14, 16, v9"); e("v_and_b32 v15, 0xffff0000, v9")
        e("v_lshlrev_b32 v16, 16, v10"); e("v_and_b32 v17, 0xffff0000, v10")
        e("v_lshlrev_b32 v18, 16, v11"); e("v_and_b32 v19, 0xffff0000, v11")
    for i in range(8):
        for j in range(4):
            r=128+4*i+j
            e("v_cvt_f32_i32 v%d, v%d"%(r,r))
            e("v_cvt_pk_bf16_f32 v%d, 0, v%d"%(r,r))
            e("v_sub_f32 v%d, v%d, v%d"%(r,r,16+j))
            e("v_cvt_pk_bf16_f32 v%d, 0, v%d"%(r,r))
            e("v_mul_f32 v%d, v%d, v%d"%(r,r,12+j))
    for j in range(4):
        for p in range(4):
            e("v_cvt_pk_bf16_f32 v%d, v%d, v%d"%(32+4*j+p,128+4*(2*p)+j,128+4*(2*p+1)+j))
    e("s_nop 1")
    for t in range(4):
        for j in range(4):
            a=64+(t*4+j)*4
            e("v_mfma_f32_16x16x32_bf16 v[%d:%d], v[%d:%d], v[%d:%d], v[%d:%d]"%(a,a+3,160+4*t,163+4*t,32+4*j,35+4*j,a,a+3))
e("v_add_u32 v6, %d, v6"%(N*2))
e("s_add_u32 s60, s60, 1")
e("s_cmp_lt_u32 s60, 9")
e("s_cbranch_scc1 L_loop")
e("s_nop 15")
e("s_nop 7")
e("s_mul_i32 s41, s16, %d"%(64*9216))
e("s_add_u32 s41, s41, s19")
e("v_mul_u32_u24 v20, %d, v4"%(4*9216))
e("v_lshl_add_u32 v20, v3, 3, v20")
e("v_add_u32 v20, s41, v20")
for t in range(4):
    for r in range(4):
        e("v_cvt_pk_bf16_f32 v22, v%d, v%d"%(64+(t*4+0)*4+r,64+(t*4+1)*4+r))
        e("v_cvt_pk_bf16_f32 v23, v%d, v%d"%(64+(t*4+2)*4+r,64+(t*4+3)*4+r))
        e("s_mov_b32 s42, %d"%((t*16+r)*9216))
        e("buffer_store_dwordx2 v[22:23], v20, s[36:39], s42 offen")
        e("s_nop 1")
L.append("L_done:")
e("s_endpgm")
L.append('.section .rodata,"a"')
L.append(".p2align 6")
L.append(".amdhsa_kernel %s_kernel"%NAME)
L.append("  .amdhsa_next_free_vgpr 176")
L.append("  .amdhsa_next_free_sgpr 64")
L.append("  .amdhsa_accum_offset 176")
L.append("  .amdhsa_group_segment_fixed_size 0")
L.append("  .amdhsa_kernarg_size 56")
L.append("  .amdhsa_user_sgpr_count 2")
L.append("  .amdhsa_user_sgpr_kernarg_segment_ptr 1")
L.append("  .amdhsa_system_sgpr_workgroup_id_x 1")
L.append(".end_amdhsa_kernel")
open(sys.argv[1],'w').write('\n'.join(L)+'\n')
```
